```python
import torch

def _softmax(x, axis=-1):
    return torch.softmax(x, dim=axis)
def _gelu(x):
    return torch.nn.functional.gelu(x, approximate="tanh")
def _silu(x):
    return torch.nn.functional.silu(x)
def _sigmoid(x):
    return torch.sigmoid(x)
def _layernorm(x, axis=-1, eps=1e-5):
    m = x.mean(dim=axis, keepdim=True)
    v = x.var(dim=axis, keepdim=True, unbiased=False)
    return (x - m) / torch.sqrt(v + eps)
def _scatter_add(tgt, idx, src, axis=0):
    return tgt.clone().index_add_(axis, idx, src)
def _segment_sum(src, seg, n):
    out = torch.zeros((n,) + src.shape[1:], dtype=src.dtype)
    return out.index_add_(0, seg, src)
def _pad(x, pw):
    flat = tuple(v for pair in reversed(pw) for v in pair)
    return torch.nn.functional.pad(x, flat)

kernel_name = 'standalone__rezero__sampling'

def setup_inputs():

    _w = (lambda a: (lambda t: t.to(torch.bfloat16) if t.is_floating_point() else t)(torch.as_tensor(a)))
    B, S, D = 512, 32, 640
    return {
        "x": _w((lambda *s: torch.randn(*s, dtype=torch.bfloat16) * 0.05)(B, S, D)),
        "fx": _w((lambda *s: torch.randn(*s, dtype=torch.bfloat16) * 0.8)(B, S, D)),
        "alpha": _w((lambda *s: torch.randn(*s, dtype=torch.bfloat16) * 0.8)(1) * 0.1),
    }

def reference(x, fx, alpha):
    return x + alpha * fx
```

```python
import sys, argparse

NBYTES = 512*32*640*2
NCHUNK = NBYTES//16

HEADER = """; Kernarg layout for this problem (48 bytes, ptrs only, base s[0:1]):
; grid=ceil(out_elems/256), lds=0). Harness parses it; keep it on one line.
; @launch grid=({grid},1,1) block=({block},1,1) lds=0
.amdgcn_target "amdgcn-amd-amdhsa--gfx950"
.text
.globl standalone__rezero__sampling_kernel
.p2align 8
.type standalone__rezero__sampling_kernel,@function
standalone__rezero__sampling_kernel:
"""

FOOTER = """.section .rodata,"a"
.p2align 6
.amdhsa_kernel standalone__rezero__sampling_kernel
  .amdhsa_next_free_vgpr {nvgpr}
  .amdhsa_next_free_sgpr {nsgpr}
  .amdhsa_accum_offset {accum}
  .amdhsa_group_segment_fixed_size 0
  .amdhsa_kernarg_size 48
  .amdhsa_user_sgpr_count 2
  .amdhsa_user_sgpr_kernarg_segment_ptr 1
  .amdhsa_system_sgpr_workgroup_id_x 1
  .amdhsa_float_denorm_mode_32 3
  .amdhsa_float_denorm_mode_16_64 3
.end_amdhsa_kernel
"""

def compute_exact(x, f, t, sa, sm, pk=True):
    L = []
    for i in range(4):
        xi, fi = x+i, f+i
        t0, t1, u0, u1 = t, t+1, t+2, t+3
        L.append(f"v_lshlrev_b32 v{t0}, 16, v{fi}")
        L.append(f"v_and_b32 v{t1}, s{sm}, v{fi}")
        if pk:
            L.append(f"v_pk_mul_f32 v[{t0}:{t1}], v[{t0}:{t1}], s[{sa}:{sa+1}]")
        else:
            L.append(f"v_mul_f32 v{t0}, s{sa}, v{t0}")
            L.append(f"v_mul_f32 v{t1}, s{sa}, v{t1}")
        L.append(f"v_cvt_pk_bf16_f32 v{fi}, v{t0}, v{t1}")
        L.append(f"v_lshlrev_b32 v{u0}, 16, v{xi}")
        L.append(f"v_and_b32 v{u1}, s{sm}, v{xi}")
        L.append(f"v_lshlrev_b32 v{t0}, 16, v{fi}")
        L.append(f"v_and_b32 v{t1}, s{sm}, v{fi}")
        if pk:
            L.append(f"v_pk_add_f32 v[{u0}:{u1}], v[{u0}:{u1}], v[{t0}:{t1}]")
        else:
            L.append(f"v_add_f32 v{u0}, v{u0}, v{t0}")
            L.append(f"v_add_f32 v{u1}, v{u1}, v{t1}")
        L.append(f"v_cvt_pk_bf16_f32 v{xi}, v{u0}, v{u1}")
    return L

def compute_fused(x, f, t, sa, sm, pk=True):
    L = []
    for i in range(4):
        xi, fi = x+i, f+i
        t0, t1, u0, u1 = t, t+1, t+2, t+3
        L.append(f"v_lshlrev_b32 v{t0}, 16, v{fi}")
        L.append(f"v_and_b32 v{t1}, s{sm}, v{fi}")
        L.append(f"v_lshlrev_b32 v{u0}, 16, v{xi}")
        L.append(f"v_and_b32 v{u1}, s{sm}, v{xi}")
        L.append(f"v_pk_fma_f32 v[{u0}:{u1}], v[{t0}:{t1}], s[{sa}:{sa+1}], v[{u0}:{u1}]")
        L.append(f"v_cvt_pk_bf16_f32 v{xi}, v{u0}, v{u1}")
    return L

def gen(block=256, ch=1, layout="wg", lf="", sf="", math="exact", pk=True, order="xf"):
    nthreads = NCHUNK // ch
    assert nthreads * ch == NCHUNK
    grid = nthreads // block
    assert grid * block == nthreads
    L = []
    A = L.append
    lf = (" " + lf) if lf else ""
    sf = (" " + sf) if sf else ""
    A("s_load_dwordx8 s[4:11], s[0:1], 0")
    A(f"s_cmp_ge_u32 s2, {grid}")
    A("s_cbranch_scc1 L_done")
    soffs = []
    if layout == "wg":
        A(f"s_mul_i32 s3, s2, {block*16*ch}")
        A("v_lshlrev_b32 v0, 4, v0")
        stride = block*16
    elif layout == "wave":
        A(f"s_mul_i32 s3, s2, {block*16*ch}")
        A("v_lshrrev_b32 v1, 6, v0")
        A("v_and_b32 v0, 63, v0")
        A(f"v_mul_u32_u24 v1, {1024*ch}, v1")
        A("v_lshl_add_u32 v0, v0, 4, v1")
        stride = 1024
    elif layout == "grid":
        A(f"s_mul_i32 s3, s2, {block*16}")
        A("v_lshlrev_b32 v0, 4, v0")
        stride = NBYTES//ch
    so = [3] + [24+j for j in range(ch-1)]
    for j in range(1, ch):
        A(f"s_add_u32 s{so[j]}, s3, {stride*j}")
    A("s_mov_b32 s14, %d" % NBYTES)
    A("s_mov_b32 s15, 0x20000")
    A("s_mov_b32 s18, %d" % NBYTES)
    A("s_mov_b32 s19, 0x20000")
    A("s_mov_b32 s22, %d" % NBYTES)
    A("s_mov_b32 s23, 0x20000")
    A("s_waitcnt lgkmcnt(0)")
    A("s_mov_b32 s12, s4")
    A("s_mov_b32 s13, s5")
    A("s_mov_b32 s16, s6")
    A("s_mov_b32 s17, s7")
    A("s_load_dword s4, s[8:9], 0")
    A("s_mov_b32 s20, s10")
    A("s_mov_b32 s21, s11")
    xr = [8+8*j for j in range(ch)]
    fr = [12+8*j for j in range(ch)]
    if order == "xf":
        for j in range(ch):
            A(f"buffer_load_dwordx4 v[{xr[j]}:{xr[j]+3}], v0, s[12:15], s{so[j]} offen{lf}")
            A(f"buffer_load_dwordx4 v[{fr[j]}:{fr[j]+3}], v0, s[16:19], s{so[j]} offen{lf}")
    else:
        raise ValueError
    A("s_mov_b32 s6, 0xffff0000")
    A("s_waitcnt lgkmcnt(0)")
    A("s_lshl_b32 s4, s4, 16")
    A("s_mov_b32 s5, s4")
    for j in range(ch):
        n = 2*(ch-1-j) + j
        A(f"s_waitcnt vmcnt({n})")
        fn = compute_exact if math == "exact" else compute_fused
        L.extend(fn(xr[j], fr[j], 4, 4, 6, pk))
        A(f"buffer_store_dwordx4 v[{xr[j]}:{xr[j]+3}], v0, s[20:23], s{so[j]} offen{sf}")
    A("L_done:")
    A("s_endpgm")
    nv = 8+8*ch
    body = "".join(("    " + l if not l.endswith(":") else l) + "\n" for l in L)
    accum = (nv+3)//4*4
    return HEADER.format(grid=grid, block=block) + body + FOOTER.format(nvgpr=nv, nsgpr=32 if ch <= 8 else 48, accum=accum)

if __name__ == "__main__":
    p = argparse.ArgumentParser()
    p.add_argument("--block", type=int, default=256)
    p.add_argument("--ch", type=int, default=1)
    p.add_argument("--layout", default="wg")
    p.add_argument("--lf", default="")
    p.add_argument("--sf", default="")
    p.add_argument("--math", default="exact")
    p.add_argument("--nopk", action="store_true")
    p.add_argument("-o", default=None)
    a = p.parse_args()
    s = gen(a.block, a.ch, a.layout, a.lf, a.sf, a.math, not a.nopk)
    if a.o: open(a.o, "w").write(s)
    else: sys.stdout.write(s)
```

```python
import sys
sys.path.insert(0,'gen')
import gen
NB = gen.NBYTES

def gen_pipe(block=256, iters=5, depth=2, lf="", sf="", loc=False, layout="grid", math="exact"):
    nthreads = gen.NCHUNK // iters
    assert nthreads * iters == gen.NCHUNK
    grid = nthreads // block
    assert grid*block == nthreads
    L = []; A = L.append
    lf = (" " + lf) if lf else ""; sf = (" " + sf) if sf else ""
    A("s_load_dwordx8 s[4:11], s[0:1], 0")
    if loc: A("s_load_dword s28, s[0:1], 32")
    A(f"s_cmp_ge_u32 s2, {grid}")
    A("s_cbranch_scc1 L_done")
    A("v_lshlrev_b32 v0, 4, v0")
    wgbytes = block*16
    so = [40+j for j in range(iters)]
    if not loc:
        if layout == "grid":
            A(f"s_mul_i32 s3, s2, {wgbytes}")
            stride = NB//iters
        else:
            A(f"s_mul_i32 s3, s2, {wgbytes*iters}")
            stride = wgbytes
        for j in range(iters):
            A(f"s_add_u32 s{so[j]}, s3, {stride*j}")
    A("s_mov_b32 s14, %d" % NB); A("s_mov_b32 s15, 0x20000")
    A("s_mov_b32 s18, %d" % NB); A("s_mov_b32 s19, 0x20000")
    A("s_mov_b32 s22, %d" % NB); A("s_mov_b32 s23, 0x20000")
    if loc:
        A("s_lshr_b32 s24, s2, 3"); A("s_lshl_b32 s24, s24, 2"); A("s_and_b32 s25, s2, 3"); A("s_or_b32 s24, s24, s25")
        A("s_bfe_u32 s25, s2, 0x10002")
        A(f"s_mul_i32 s24, s24, {wgbytes if layout=='grid' else wgbytes*iters}")
    A("s_waitcnt lgkmcnt(0)")
    if loc:
        hstride = (NB//2)//iters if layout == "grid" else wgbytes
        for j in range(iters):
            A(f"s_add_u32 s26, s24, {hstride*j}")
            A("s_lshr_b32 s27, s26, 13")
            A("s_and_b32 s26, s26, 8191")
            A("s_lshr_b32 s29, s27, 7")
            A("s_lshr_b32 s29, s28, s29"); A("s_and_b32 s29, s29, 1"); A("s_xor_b32 s29, s29, s25")
            A("s_lshl_b32 s29, s29, 13")
            A("s_lshl_b32 s27, s27, 14")
            A("s_or_b32 s27, s27, s29")
            A(f"s_or_b32 s{so[j]}, s27, s26")
    A("s_mov_b32 s12, s4"); A("s_mov_b32 s13, s5"); A("s_mov_b32 s16, s6"); A("s_mov_b32 s17, s7")
    A("s_load_dword s4, s[8:9], 0")
    A("s_mov_b32 s20, s10"); A("s_mov_b32 s21, s11")
    nslot = depth
    xr = [8+8*k for k in range(nslot)]
    fr = [12+8*k for k in range(nslot)]
    def load(j):
        k = j % nslot
        A(f"buffer_load_dwordx4 v[{xr[k]}:{xr[k]+3}], v0, s[12:15], s{so[j]} offen{lf}")
        A(f"buffer_load_dwordx4 v[{fr[k]}:{fr[k]+3}], v0, s[16:19], s{so[j]} offen{lf}")
    issued = []
    for j in range(min(depth, iters)):
        load(j); issued += [("L", j), ("L", j)]
    A("s_mov_b32 s6, 0xffff0000")
    A("s_waitcnt lgkmcnt(0)")
    A("s_lshl_b32 s4, s4, 16"); A("s_mov_b32 s5, s4")
    fn = gen.compute_exact if math == "exact" else gen.compute_fused
    for j in range(iters):
        k = j % nslot
        last = max(i for i, t in enumerate(issued) if t == ("L", j))
        n = len(issued) - 1 - last
        A(f"s_waitcnt vmcnt({min(n,63)})")
        L.extend(fn(xr[k], fr[k], 4, 4, 6, True))
        A(f"buffer_store_dwordx4 v[{xr[k]}:{xr[k]+3}], v0, s[20:23], s{so[j]} offen{sf}"); issued.append(("S", j))
        if j + depth < iters:
            load(j+depth); issued += [("L", j+depth)]*2
    A("L_done:"); A("s_endpgm")
    nv = 8 + 8*nslot
    body = "".join(("    " + l if not l.endswith(":") else l) + "\n" for l in L)
    return gen.HEADER.format(grid=grid, block=block) + body + gen.FOOTER.format(nvgpr=nv, nsgpr=40+iters+2, accum=(nv+3)//4*4), grid

if __name__ == "__main__":
    import subprocess
    names = []
    for loc in (False, True):
        for (iters, depth) in [(5,1),(5,2),(5,3),(5,5),(10,1),(10,2),(10,3),(10,4),(20,2),(20,4),(4,1),(4,2),(8,2),(8,3)]:
            n = f"p{'L' if loc else 'B'}_i{iters}_d{depth}"
            s, g = gen_pipe(256, iters, depth, "nt", "sc1", loc)
            open(f"var/{n}.s", "w").write(s); names.append((n, g))
    subprocess.run(["python3", "mkco.py"] + [f"var/{n}.s" for n, g in names], stdout=subprocess.DEVNULL)
    print(" ".join(f"{n}.co:{g}:256" for n, g in names))
    print(str([f"bench/{n}.co" for n, g in names]).replace("'", '"'))
```

```python
import sys
sys.path.insert(0,'gen')
import gen
NB = gen.NBYTES

def compute_il(x, f, t, sa, sm, nd=4):
    L = []
    T = lambda i: t + 2*i
    U = lambda i: t + 2*nd + 2*i
    for i in range(nd):
        L.append(f"v_lshlrev_b32 v{T(i)}, 16, v{f+i}")
        L.append(f"v_and_b32 v{T(i)+1}, s{sm}, v{f+i}")
    for i in range(nd):
        L.append(f"v_pk_mul_f32 v[{T(i)}:{T(i)+1}], v[{T(i)}:{T(i)+1}], s[{sa}:{sa+1}]")
    for i in range(nd):
        L.append(f"v_lshlrev_b32 v{U(i)}, 16, v{x+i}")
        L.append(f"v_and_b32 v{U(i)+1}, s{sm}, v{x+i}")
    for i in range(nd):
        L.append(f"v_cvt_pk_bf16_f32 v{f+i}, v{T(i)}, v{T(i)+1}")
    for i in range(nd):
        L.append(f"v_lshlrev_b32 v{T(i)}, 16, v{f+i}")
        L.append(f"v_and_b32 v{T(i)+1}, s{sm}, v{f+i}")
    for i in range(nd):
        L.append(f"v_pk_add_f32 v[{U(i)}:{U(i)+1}], v[{U(i)}:{U(i)+1}], v[{T(i)}:{T(i)+1}]")
    for i in range(nd):
        L.append(f"v_cvt_pk_bf16_f32 v{x+i}, v{U(i)}, v{U(i)+1}")
    return L

def gen_opt(block=256, ch=4, lf="nt", sf="sc1", order="pair", remap=None):
    nthreads = gen.NCHUNK // ch
    assert nthreads*ch == gen.NCHUNK
    grid = nthreads // block
    assert grid*block == nthreads
    wgb = block*16*ch
    L = []; A = L.append
    lf = (" " + lf) if lf else ""; sf = (" " + sf) if sf else ""
    center = 0
    offs = [j*1024 for j in range(ch)]
    if offs[-1] > 4095:
        center = (ch//2)*1024
        offs = [o - center for o in offs]
        assert offs[0] >= -4096 and offs[-1] <= 4095
    A("s_load_dwordx8 s[4:11], s[0:1], 0")
    A(f"s_cmpk_ge_u32 s2, {grid}")
    A("s_cbranch_scc1 L_done")
    if block > 64:
        A("v_lshrrev_b32 v1, 6, v0")
    if (wgb & (wgb-1)) == 0:
        A(f"s_lshl_b32 s3, s2, {wgb.bit_length()-1}")
    else:
        A(f"s_mul_i32 s3, s2, {wgb}")
    if center:
        A(f"s_add_u32 s3, s3, {center}")
    if block > 64:
        A(f"v_mul_u32_u24 v1, {1024*(ch-1)}, v1")
        A("v_lshl_add_u32 v0, v0, 4, v1")
        A("v_add_u32 v0, s3, v0")
    else:
        A("v_lshl_add_u32 v0, v0, 4, s3")
    A("s_waitcnt lgkmcnt(0)")
    xr = [4+8*j for j in range(ch)]
    fr = [8+8*j for j in range(ch)]
    tmp = 4+8*ch
    o = lambda j: (f" offset:{offs[j]}" if offs[j] else "")
    if order == "pair":
        for j in range(ch):
            A(f"global_load_dwordx4 v[{xr[j]}:{xr[j]+3}], v0, s[4:5]{o(j)}{lf}")
            A(f"global_load_dwordx4 v[{fr[j]}:{fr[j]+3}], v0, s[6:7]{o(j)}{lf}")
        waits = [2*(ch-1-j) + j for j in range(ch)]
    elif order == "fx_first":
        for j in range(ch):
            A(f"global_load_dwordx4 v[{fr[j]}:{fr[j]+3}], v0, s[6:7]{o(j)}{lf}")
        for j in range(ch):
            A(f"global_load_dwordx4 v[{xr[j]}:{xr[j]+3}], v0, s[4:5]{o(j)}{lf}")
        waits = [(ch-1-j) + j for j in range(ch)]
    A("s_load_dword s12, s[8:9], 0")
    A("s_mov_b32 s14, 0xffff0000")
    A("s_waitcnt lgkmcnt(0)")
    A("s_lshl_b32 s12, s12, 16")
    A("s_mov_b32 s13, s12")
    for j in range(ch):
        A(f"s_waitcnt vmcnt({waits[j]})")
        L.extend(compute_il(xr[j], fr[j], tmp, 12, 14))
        A(f"global_store_dwordx4 v0, v[{xr[j]}:{xr[j]+3}], s[10:11]{o(j)}{sf}")
    A("L_done:"); A("s_endpgm")
    nv = tmp + 16
    body = "".join(("    " + l if not l.endswith(":") else l) + "\n" for l in L)
    return gen.HEADER.format(grid=grid, block=block) + body + gen.FOOTER.format(nvgpr=nv, nsgpr=16, accum=(nv+3)//4*4), grid

def build(cfgs):
    import subprocess
    names = []
    for n, kw in cfgs:
        s, g = gen_opt(**kw)
        open(f"var/{n}.s", "w").write(s); names.append((n, g, kw.get("block", 256)))
    subprocess.run(["python3", "mkco.py"] + [f"var/{n}.s" for n, g, b in names], stdout=subprocess.DEVNULL)
    print(" ".join(f"{n}.co:{g}:{b}" for n, g, b in names))
    print(str(["bench/bench3"]+[f"bench/{n}.co" for n, g, b in names]).replace("'", '"'))

if __name__ == "__main__":
    cfgs = []
    for (block, ch) in [(256,4),(256,5),(128,5),(128,4),(64,4),(64,5),(512,4),(256,2),(128,2),(256,8),(256,1)]:
        cfgs.append((f"O_b{block}_c{ch}", dict(block=block, ch=ch)))
    cfgs.append(("O_b256_c4_ff", dict(block=256, ch=4, order="fx_first")))
    cfgs.append(("O_b256_c4_s01", dict(block=256, ch=4, sf="sc0 sc1")))
    cfgs.append(("O_b256_c4_sd", dict(block=256, ch=4, sf="")))
    cfgs.append(("O_b256_c4_ld", dict(block=256, ch=4, lf="")))
    build(cfgs)
```
